```python
import torch

def _softmax(x, axis=-1):
    return torch.softmax(x, dim=axis)
def _gelu(x):
    return torch.nn.functional.gelu(x, approximate="tanh")
def _silu(x):
    return torch.nn.functional.silu(x)
def _sigmoid(x):
    return torch.sigmoid(x)
def _layernorm(x, axis=-1, eps=1e-5):
    m = x.mean(dim=axis, keepdim=True)
    v = x.var(dim=axis, keepdim=True, unbiased=False)
    return (x - m) / torch.sqrt(v + eps)
def _scatter_add(tgt, idx, src, axis=0):
    return tgt.clone().index_add_(axis, idx, src)
def _segment_sum(src, seg, n):
    out = torch.zeros((n,) + src.shape[1:], dtype=src.dtype)
    return out.index_add_(0, seg, src)
def _pad(x, pw):
    flat = tuple(v for pair in reversed(pw) for v in pair)
    return torch.nn.functional.pad(x, flat)

kernel_name = 'standalone__deepnorm__sampling'

def setup_inputs():

    _w = (lambda a: (lambda t: t.to(torch.bfloat16) if t.is_floating_point() else t)(torch.as_tensor(a)))
    B, S, D = 1024, 32, 512
    return {
        "x": _w((lambda *s: torch.randn(*s, dtype=torch.bfloat16) * 0.05)(B, S, D)),
        "f": _w((lambda *s: torch.randn(*s, dtype=torch.bfloat16) * 0.05)(B, S, D)),
        "g": _w((lambda *s: torch.randn(*s, dtype=torch.bfloat16) * 0.05)(D) + 1.0),
        "b": _w((lambda *s: torch.randn(*s, dtype=torch.bfloat16) * 0.4)(D)),
        "alpha": _w(float(2.0)),
    }

def reference(x, f, g, b, alpha):
    return _layernorm(alpha * x + f, axis=-1) * g + b
```

```python
import sys, argparse

HEADER = """; Kernarg layout for this problem (64 bytes, ptrs only, base s[0:1]):
"""
NAME = "standalone__deepnorm__sampling_kernel"
ROWS = 32768

def gen(R=4, G=4, WPB=4, ldf="", stf="", gbf="", diag=False, nostore=False, noload=False, diag2=False, nocomp=False, numa=0, alu=0, rd2=False):
    assert R % G == 0
    NG = R // G
    NWG = ROWS // (R * WPB)
    log2R = R.bit_length() - 1
    o = []
    e = o.append
    e(HEADER + f"; @launch grid=({NWG},1,1) block=({64*WPB},1,1) lds=0")
    e('.amdgcn_target "amdgcn-amd-amdhsa--gfx950"')
    e(".text")
    e(f".globl {NAME}")
    e(".p2align 8")
    e(f".type {NAME},@function")
    e(f"{NAME}:")
    if diag2:
        e("    s_memrealtime s[40:41]")
        e("    s_load_dwordx2 s[44:45], s[0:1], 56")
    if diag:
        e("    s_memrealtime s[40:41]")
        e("    s_load_dwordx2 s[44:45], s[0:1], 48")
    e("    s_load_dwordx8 s[16:23], s[0:1], 0")
    e("    s_load_dwordx4 s[24:27], s[0:1], 32")
    e(f"    s_cmp_ge_u32 s2, {NWG}")
    e("    s_cbranch_scc1 L_end")
    vOff, vGB = 1, 2
    vT = 4
    vG = 12
    vD = 28
    nv = vD + 8 * R
    bias = 4096 if R == 8 else 0
    e(f"    s_lshl_b32 s3, s2, {10 + log2R + (WPB.bit_length()-1)}")
    if bias:
        e(f"    s_add_u32 s3, s3, {bias}")
    e(f"    v_and_b32 v{vGB}, 63, v0")
    e(f"    v_lshlrev_b32 v{vGB}, 4, v{vGB}")
    e(f"    v_lshrrev_b32 v3, 6, v0")
    e(f"    v_lshl_add_u32 v{vOff}, v3, {10+log2R}, v{vGB}")
    e(f"    v_add_u32 v{vOff}, s3, v{vOff}")
    if numa:
        assert R == 4 and WPB == 4
        e("    s_lshr_b32 s4, s2, 3")
        e("    s_lshl_b32 s4, s4, 2")
        e("    s_and_b32 s5, s2, 3")
        e("    s_or_b32 s4, s4, s5")
        e("    s_lshr_b32 s5, s2, 2")
        e("    s_lshr_b32 s6, s4, 6")
        e("    s_xor_b32 s5, s5, s6")
        if numa == 2:
            e("    s_xor_b32 s5, s5, 1")
        e("    s_and_b32 s5, s5, 1")
        e("    s_lshl_b32 s4, s4, 15")
        e("    s_lshl_b32 s5, s5, 13")
        e("    s_or_b32 s4, s4, s5")
        e("    v_and_b32 v4, 1, v3")
        e("    v_lshlrev_b32 v4, 12, v4")
        e("    v_lshrrev_b32 v5, 1, v3")
        e("    v_lshl_add_u32 v4, v5, 14, v4")
        e(f"    v_add3_u32 v{vOff}, v4, s4, v{vGB}")
    e("    s_mov_b32 s30, 0xffff0000")
    e("    s_mov_b32 s31, 0x3b000000")
    e("    s_mov_b32 s29, 0x3727c5ac")
    if alu:
        e(f"    s_mov_b32 s8, {alu}")
        e("    v_mov_b32 v8, 1.0")
        e("L_alu:")
        for q in range(8):
            e("    v_fma_f32 v8, v8, v8, v8")
        e("    s_sub_u32 s8, s8, 1")
        e("    s_cmp_lg_u32 s8, 0")
        e("    s_cbranch_scc1 L_alu")
    e("    s_waitcnt lgkmcnt(0)")
    e("    s_load_dword s28, s[24:25], 0")
    if rd2:
        e("    s_load_dwordx2 s[8:9], s[0:1], 56")
        e("    s_waitcnt lgkmcnt(0)")
        e("    s_add_u32 s10, s8, 0x2000000")
        e("    s_addc_u32 s11, s9, 0")
        for r in range(R):
            X = vD + 8 * r
            e(f"    global_load_dwordx4 v[{X}:{X+3}], v{vOff}, s[8:9] offset:{r*1024-bias} nt")
            e(f"    global_load_dwordx4 v[{X+4}:{X+7}], v{vOff}, s[10:11] offset:{r*1024-bias} nt")
        e("    s_waitcnt vmcnt(0)")
    def ld(r):
        X = vD + 8 * r
        if noload:
            for q in range(8):
                e(f"    v_mov_b32 v{X+q}, v0")
            return
        e(f"    global_load_dwordx4 v[{X}:{X+3}], v{vOff}, s[16:17] offset:{r*1024-bias} {ldf}".rstrip())
        e(f"    global_load_dwordx4 v[{X+4}:{X+7}], v{vOff}, s[18:19] offset:{r*1024-bias} {ldf}".rstrip())
    e(f"    global_load_dwordx4 v[{vG+4}:{vG+7}], v{vGB}, s[20:21] {gbf}".rstrip())
    e(f"    global_load_dwordx4 v[{vG+12}:{vG+15}], v{vGB}, s[22:23] {gbf}".rstrip())
    for r in range(R):
        ld(r)
    nout = 2 * R
    e(f"    s_waitcnt vmcnt({0 if noload else 2*R}) lgkmcnt(0)")
    e("    s_lshl_b32 s28, s28, 16")
    for j in range(4):
        e(f"    v_lshlrev_b32 v{vG+j}, 16, v{vG+4+j}")
        e(f"    v_and_b32 v{vG+4+j}, s30, v{vG+4+j}")
        e(f"    v_lshlrev_b32 v{vG+8+j}, 16, v{vG+12+j}")
        e(f"    v_and_b32 v{vG+12+j}, s30, v{vG+12+j}")
    stores = 0
    for gi in range(NG):
        rows = list(range(gi * G, gi * G + G))
        for k, r in enumerate(rows):
            X = vD + 8 * r; F = X + 4
            remaining = 2 * (R - 1 - r) + stores
            if not noload: e(f"    s_waitcnt vmcnt({remaining})")
            if diag2 and r == R-1: e("    s_memrealtime s[48:49]")
            if diag2 and r == 0: e("    s_memrealtime s[52:53]")
            if nocomp:
                for q in range(4):
                    e(f"    v_xor_b32 v{X+q}, v{X+q}, v{F+q}")
                if not nostore:
                    e(f"    global_store_dwordx4 v{vOff}, v[{X}:{X+3}], s[26:27] offset:{r*1024-bias} {stf}".rstrip())
                    stores += 1
                continue
            for h in range(2):
                a = X + 2 * h; b = F + 2 * h
                e(f"    v_lshlrev_b32 v{vT}, 16, v{a}")
                e(f"    v_lshlrev_b32 v{vT+1}, 16, v{a+1}")
                e(f"    v_lshlrev_b32 v{vT+2}, 16, v{b}")
                e(f"    v_lshlrev_b32 v{vT+3}, 16, v{b+1}")
                e(f"    v_and_b32 v{a}, s30, v{a}")
                e(f"    v_and_b32 v{a+1}, s30, v{a+1}")
                e(f"    v_and_b32 v{b}, s30, v{b}")
                e(f"    v_and_b32 v{b+1}, s30, v{b+1}")
                e(f"    v_pk_fma_f32 v[{b}:{b+1}], v[{a}:{a+1}], s[28:29], v[{b}:{b+1}] op_sel_hi:[1,0,1]")
                e(f"    v_pk_fma_f32 v[{a}:{a+1}], v[{vT}:{vT+1}], s[28:29], v[{vT+2}:{vT+3}] op_sel_hi:[1,0,1]")
            e(f"    v_pk_add_f32 v[{vT}:{vT+1}], v[{X}:{X+1}], v[{X+2}:{X+3}]")
            e(f"    v_pk_add_f32 v[{vT+2}:{vT+3}], v[{F}:{F+1}], v[{F+2}:{F+3}]")
            e(f"    v_pk_add_f32 v[{vT}:{vT+1}], v[{vT}:{vT+1}], v[{vT+2}:{vT+3}]")
            e(f"    v_add_f32 v{vT+4+k}, v{vT}, v{vT+1}")
        if nocomp: continue
        S = vT + 4
        lanes = reduce_group(e, S, G)
        e(f"    v_mul_f32 v{S}, s31, v{S}")
        e("    s_nop 0")
        for k in range(G):
            e(f"    v_readlane_b32 s{32+2*k}, v{S}, {lanes[k]}")
        e("    s_nop 1")
        for k, r in enumerate(rows):
            X = vD + 8 * r
            for p in range(4):
                a = X + 2 * p
                e(f"    v_pk_add_f32 v[{a}:{a+1}], v[{a}:{a+1}], s[{32+2*k}:{33+2*k}] op_sel_hi:[1,0] neg_lo:[0,1] neg_hi:[0,1]")
            e(f"    v_pk_mul_f32 v[{vT}:{vT+1}], v[{X}:{X+1}], v[{X}:{X+1}]")
            for p in range(1, 4):
                a = X + 2 * p
                e(f"    v_pk_fma_f32 v[{vT}:{vT+1}], v[{a}:{a+1}], v[{a}:{a+1}], v[{vT}:{vT+1}]")
            e(f"    v_add_f32 v{S+k}, v{vT}, v{vT+1}")
        lanes = reduce_group(e, S, G)
        e(f"    v_mov_b32 v{vT}, s29")
        e(f"    v_fma_f32 v{S}, v{S}, s31, v{vT}")
        e(f"    v_rsq_f32 v{S}, v{S}")
        e("    s_nop 1")
        for k in range(G):
            e(f"    v_readlane_b32 s{32+2*k}, v{S}, {lanes[k]}")
        e("    s_nop 1")
        for k, r in enumerate(rows):
            X = vD + 8 * r; F = X + 4
            for p in range(4):
                a = X + 2 * p
                e(f"    v_pk_mul_f32 v[{a}:{a+1}], v[{a}:{a+1}], s[{32+2*k}:{33+2*k}] op_sel_hi:[1,0]")
            for p in range(4):
                a = X + 2 * p
                e(f"    v_pk_fma_f32 v[{a}:{a+1}], v[{a}:{a+1}], v[{vG+2*p}:{vG+2*p+1}], v[{vG+8+2*p}:{vG+8+2*p+1}]")
            for j in range(4):
                e(f"    v_cvt_pk_bf16_f32 v{X+j}, v{X+j}, v{F+j}")
            if not nostore:
                e(f"    global_store_dwordx4 v{vOff}, v[{X}:{X+3}], s[26:27] offset:{r*1024-bias} {stf}".rstrip())
                stores += 1
    if diag2:
        e("    s_memrealtime s[50:51]")
        e("    s_waitcnt vmcnt(0)")
        e("    s_memrealtime s[42:43]")
        e("    s_getreg_b32 s46, hwreg(HW_REG_XCC_ID)")
        e("    s_getreg_b32 s47, hwreg(HW_REG_HW_ID)")
        e("    v_lshrrev_b32 v3, 6, v0")
        e(f"    s_lshl_b32 s3, s2, {WPB.bit_length()-1}")
        e("    v_add_u32 v3, s3, v3")
        e("    v_lshlrev_b32 v3, 5, v3")
        e("    v_and_b32 v4, 63, v0")
        e("    v_cmp_eq_u32 vcc, 0, v4")
        e("    s_and_saveexec_b64 s[54:55], vcc")
        e("    s_waitcnt lgkmcnt(0)")
        e("    v_mov_b32 v4, s40")
        e("    v_mov_b32 v5, s52")
        e("    v_mov_b32 v6, s48")
        e("    v_mov_b32 v7, s50")
        e("    v_mov_b32 v8, s42")
        e("    v_mov_b32 v9, s46")
        e("    v_mov_b32 v10, s47")
        e("    v_mov_b32 v11, 0")
        e("    global_store_dwordx4 v3, v[4:7], s[44:45]")
        e("    global_store_dwordx4 v3, v[8:11], s[44:45] offset:16")
    if diag:
        e("    s_waitcnt vmcnt(0)")
        e("    s_memrealtime s[42:43]")
        e("    s_and_b32 s46, s2, 15")
        e("    s_cmp_eq_u32 s46, 15")
        e("    s_cbranch_scc1 L_rec")
        e("    s_cmp_lt_u32 s2, 8")
        e("    s_cbranch_scc0 L_end")
        e("L_rec:")
        e("    v_cmp_eq_u32 vcc, 0, v0")
        e("    s_and_saveexec_b64 s[46:47], vcc")
        e("    s_cbranch_execz L_end")
        e("    s_waitcnt lgkmcnt(0)")
        e("    s_not_b32 s40, s40")
        e("    v_mov_b32 v4, 0")
        e("    v_mov_b32 v5, s40")
        e("    v_mov_b32 v6, s42")
        e("    s_not_b32 s42, s42")
        e("    s_not_b32 s40, s40")
        e("    v_mov_b32 v7, s42")
        e("    v_mov_b32 v8, s40")
        e("    global_atomic_umax v4, v5, s[44:45]")
        e("    global_atomic_umax v4, v6, s[44:45] offset:4")
        e("    global_atomic_umax v4, v7, s[44:45] offset:8")
        e("    global_atomic_umax v4, v8, s[44:45] offset:12")
    e("L_end:")
    e("    s_endpgm")
    e('.section .rodata,"a"')
    e(".p2align 6")
    e(f".amdhsa_kernel {NAME}")
    e(f"  .amdhsa_next_free_vgpr {nv}")
    e("  .amdhsa_next_free_sgpr 64")
    e(f"  .amdhsa_accum_offset {(nv+3)//4*4}")
    e("  .amdhsa_group_segment_fixed_size 0")
    e("  .amdhsa_kernarg_size 64")
    e("  .amdhsa_user_sgpr_count 2")
    e("  .amdhsa_user_sgpr_kernarg_segment_ptr 1")
    e("  .amdhsa_system_sgpr_workgroup_id_x 1")
    e("  .amdhsa_float_denorm_mode_32 3")
    e(".end_amdhsa_kernel")
    return "\n".join(o) + "\n"

def dpp16(e, S):
    for c in ("quad_perm:[1,0,3,2]", "quad_perm:[2,3,0,1]", "row_half_mirror", "row_mirror"):
        e("    s_nop 1")
        e(f"    v_add_f32_dpp v{S}, v{S}, v{S} {c} row_mask:0xf bank_mask:0xf")

def reduce_group(e, S, G):
    if G == 4:
        e("    s_nop 1")
        e(f"    v_permlane32_swap_b32 v{S}, v{S+1}")
        e(f"    v_permlane32_swap_b32 v{S+2}, v{S+3}")
        e(f"    v_add_f32 v{S}, v{S}, v{S+1}")
        e(f"    v_add_f32 v{S+2}, v{S+2}, v{S+3}")
        e("    s_nop 1")
        e(f"    v_permlane16_swap_b32 v{S}, v{S+2}")
        e(f"    v_add_f32 v{S}, v{S}, v{S+2}")
        dpp16(e, S)
        return [0, 32, 16, 48]
    if G == 2:
        e("    s_nop 1")
        e(f"    v_permlane32_swap_b32 v{S}, v{S+1}")
        e(f"    v_add_f32 v{S}, v{S}, v{S+1}")
        dpp16(e, S)
        e("    s_nop 1")
        e(f"    v_add_f32_dpp v{S}, v{S}, v{S} row_bcast:15 row_mask:0xa bank_mask:0xf")
        return [31, 63]
    if G == 1:
        dpp16(e, S)
        e("    s_nop 1")
        e(f"    v_add_f32_dpp v{S}, v{S}, v{S} row_bcast:15 row_mask:0xa bank_mask:0xf")
        e("    s_nop 1")
        e(f"    v_add_f32_dpp v{S}, v{S}, v{S} row_bcast:31 row_mask:0xc bank_mask:0xf")
        return [63]

if __name__ == "__main__":
    ap = argparse.ArgumentParser()
    ap.add_argument("-R", type=int, default=4)
    ap.add_argument("-G", type=int, default=4)
    ap.add_argument("-W", type=int, default=4)
    ap.add_argument("--ldf", default="")
    ap.add_argument("--stf", default="")
    ap.add_argument("--gbf", default="")
    ap.add_argument("-o", default="-")
    ap.add_argument("--diag", action="store_true")
    ap.add_argument("--nostore", action="store_true")
    ap.add_argument("--diag2", action="store_true")
    ap.add_argument("--nocomp", action="store_true")
    ap.add_argument("--numa", type=int, default=0)
    ap.add_argument("--alu", type=int, default=0)
    ap.add_argument("--rd2", action="store_true")
    ap.add_argument("--noload", action="store_true")
    a = ap.parse_args()
    s = gen(a.R, a.G, a.W, a.ldf, a.stf, a.gbf, a.diag, a.nostore, a.noload, a.diag2, a.nocomp, a.numa, a.alu, a.rd2)
    if a.o == "-":
        sys.stdout.write(s)
    else:
        open(a.o, "w").write(s)
```

```python
import gen1, re, sys
main = gen1.gen(4, 4, 4, "nt", "sc0 sc1")
NAME = gen1.NAME
main = re.sub(r"; @launch grid.*\n", f"; @launch kernel={NAME} grid=(2048,1,1) block=(256,1,1) lds=0\n; @launch kernel=probe_kernel grid=(1,1,1) block=(64,1,1) lds=0\n", main)
p = []
e = p.append
e(".text")
e(".globl probe_kernel")
e(".p2align 8")
e(".type probe_kernel,@function")
e("probe_kernel:")
e("    s_cmp_ge_u32 s2, 1")
e("    s_cbranch_scc1 P_end")
e("    s_load_dwordx16 s[16:31], s[0:1], 0")
e("    s_getreg_b32 s50, hwreg(HW_REG_XCC_ID)")
e("    s_and_b32 s50, s50, 15")
e("    s_mov_b64 exec, 1")
e("    s_waitcnt lgkmcnt(0)")
for bi, base in enumerate((16, 18, 26)):
    e(f"    s_mov_b32 s{40+bi}, 0")
    e("    s_mov_b32 s4, 0")
    e(f"P_page{bi}:")
    e("    s_lshl_b32 s5, s4, 21")
    e("    s_add_u32 s5, s5, 0xc000")
    e("    v_mov_b32 v1, s5")
    e(f"    global_load_dword v2, v1, s[{base}:{base+1}] offset:4032 nt")
    e("    s_waitcnt vmcnt(0)")
    e("    s_mov_b32 s6, -1")
    e("    s_mov_b32 s7, -1")
    for i in range(6):
        for h in range(2):
            e(f"    v_add_u32 v3, {h*8192 + i*256}, v1")
            e("    s_memtime s[8:9]")
            e("    s_waitcnt lgkmcnt(0)")
            e(f"    global_load_dword v2, v3, s[{base}:{base+1}] nt")
            e("    s_waitcnt vmcnt(0)")
            e("    s_memtime s[10:11]")
            e("    s_waitcnt lgkmcnt(0)")
            e("    s_sub_u32 s12, s10, s8")
            e(f"    s_min_u32 s{6+h}, s{6+h}, s12")
    e("    s_cmp_lt_u32 s6, s7")
    e("    s_cselect_b32 s12, 0, 1")
    e("    s_lshl_b32 s12, s12, s4")
    e(f"    s_or_b32 s{40+bi}, s{40+bi}, s12")
    e(f"    s_mov_b32 s{44+2*bi}, s6")
    e(f"    s_mov_b32 s{45+2*bi}, s7")
    e("    s_add_u32 s4, s4, 1")
    e("    s_cmp_lt_u32 s4, 16")
    e(f"    s_cbranch_scc1 P_page{bi}")
e("    v_mov_b32 v1, 0")
vals = [40, 41, 42, 50, 16, 18, 26, 28, 44, 45, 46, 47, 48, 49, 0, 30]
for i, s in enumerate(vals):
    e(f"    v_mov_b32 v2, s{s}")
    e(f"    global_store_dword v1, v2, s[28:29] offset:{4*i}")
    e("    s_nop 1")
e("P_end:")
e("    s_endpgm")
desc = """.amdhsa_kernel probe_kernel
  .amdhsa_next_free_vgpr 8
  .amdhsa_next_free_sgpr 64
  .amdhsa_accum_offset 8
  .amdhsa_group_segment_fixed_size 0
  .amdhsa_kernarg_size 64
  .amdhsa_user_sgpr_count 2
  .amdhsa_user_sgpr_kernarg_segment_ptr 1
  .amdhsa_system_sgpr_workgroup_id_x 1
.end_amdhsa_kernel
"""
main = main.replace('.section .rodata,"a"', "\n".join(p) + '\n.section .rodata,"a"')
main += ".p2align 6\n" + desc
open(sys.argv[1], "w").write(main)
```
